```python
import torch

def _softmax(x, axis=-1):
    return torch.softmax(x, dim=axis)
def _gelu(x):
    return torch.nn.functional.gelu(x, approximate="tanh")
def _silu(x):
    return torch.nn.functional.silu(x)
def _sigmoid(x):
    return torch.sigmoid(x)
def _layernorm(x, axis=-1, eps=1e-5):
    m = x.mean(dim=axis, keepdim=True)
    v = x.var(dim=axis, keepdim=True, unbiased=False)
    return (x - m) / torch.sqrt(v + eps)
def _scatter_add(tgt, idx, src, axis=0):
    return tgt.clone().index_add_(axis, idx, src)
def _segment_sum(src, seg, n):
    out = torch.zeros((n,) + src.shape[1:], dtype=src.dtype)
    return out.index_add_(0, seg, src)
def _pad(x, pw):
    flat = tuple(v for pair in reversed(pw) for v in pair)
    return torch.nn.functional.pad(x, flat)

kernel_name = 'recurrent_scan__mha_block__glu_gated_reglu__prompt'

def setup_inputs():

    _w = (lambda a: (lambda t: t.to(torch.bfloat16) if t.is_floating_point() else t)(torch.as_tensor(a)))
    def _A_setup():
        B, S, D, H = 1, 2048, 1024, 32
        return {
            "x": _w((lambda *s: torch.randn(*s, dtype=torch.bfloat16) * 0.05)(B, S, D)),
            "wqkv": _w((lambda *s: torch.randn(*s, dtype=torch.bfloat16) * 0.2)(D, 3 * D)),
            "wo": _w((lambda *s: torch.randn(*s, dtype=torch.bfloat16) * 0.2)(D, D)),
        }
    _A_in = _A_setup()

    def _B_setup():
        B, S, D, F = 1, 2048, 1024, 3584
        return {
            "x": _w((lambda *s: torch.randn(*s, dtype=torch.bfloat16) * 0.05)(B, S, D)),
            "W_gate": _w((lambda *s: torch.randn(*s, dtype=torch.bfloat16) * 0.1)(D, F) * (2.0 / D) ** 0.5),
            "W_up": _w((lambda *s: torch.randn(*s, dtype=torch.bfloat16) * 0.1)(D, F) * (2.0 / D) ** 0.5),
            "W_down": _w((lambda *s: torch.randn(*s, dtype=torch.bfloat16) * 0.1)(F, D) * (1.0 / F) ** 0.5),
        }
    _B_in = _B_setup()

    return {
        "A_x": _A_in["x"],
        "A_wqkv": _A_in["wqkv"],
        "A_wo": _A_in["wo"],
        "B_x": _B_in["x"],
        "B_W_gate": _B_in["W_gate"],
        "B_W_up": _B_in["W_up"],
        "B_W_down": _B_in["W_down"],
    }

def reference(A_x, A_wqkv, A_wo, B_x, B_W_gate, B_W_up, B_W_down):
    def _A_ref(x, wqkv, wo):
        B, S, D = x.shape
        H = 32
        Dh = D // H
        qkv = (lambda x, *d: x.permute(*d))((x @ wqkv).reshape(B, S, 3, H, Dh), 2, 0, 3, 1, 4)
        q, k, v = qkv[0], qkv[1], qkv[2]
        scores = torch.einsum("bhqd,bhkd->bhqk", q, k) * (Dh ** -0.5)
        p = _softmax(scores, axis=-1)
        o = torch.einsum("bhqk,bhkd->bhqd", p, v)
        return (lambda x, *d: x.permute(*d))(o, 0, 2, 1, 3).reshape(B, S, D) @ wo

    def _B_ref(x, W_gate, W_up, W_down):
        gate = torch.einsum("bsd,df->bsf", x, W_gate)
        up = torch.einsum("bsd,df->bsf", x, W_up)
        gate = gate * (lambda x, dt: x.to(dt))(gate > 0, gate.dtype)
        h = gate * up
        return torch.einsum("bsf,fd->bsd", h, W_down)

    x = A_x
    xn = _layernorm(x, axis=-1)
    s = _A_ref(xn, A_wqkv, A_wo)
    g = _silu(_B_ref(xn, B_W_gate, B_W_up, B_W_down))
    return x + s * g
```

```python
MB = 1 << 20
WS_XN = 0
WS_QK = 4 * MB
WS_V = 12 * MB
WS_O = 16 * MB
WS_G = 20 * MB
WS_H = 32 * MB
WS_BYTES = 256 * MB

ARG_X, ARG_WQKV, ARG_WO, ARG_BX, ARG_WG, ARG_WU, ARG_WD, ARG_OUT, ARG_DBG, ARG_WS = [8 * i for i in range(10)]

SRD3 = "0x00020000"
import os


class Asm:
    def __init__(self):
        self.lines = []

    def __call__(self, s=""):
        for ln in s.split("\n"):
            ln = ln.strip()
            if not ln:
                continue
            if ln.endswith(":") or ln.startswith(".") or ln.startswith(";"):
                self.lines.append(ln)
            else:
                self.lines.append("    " + ln)

    def ext(self, seq):
        for s in seq:
            self(s)

    def text(self):
        return "\n".join(self.lines) + "\n"


def vr(b, n=1):
    return f"v{b}" if n == 1 else f"v[{b}:{b + n - 1}]"


def ar(b, n=1):
    return f"a{b}" if n == 1 else f"a[{b}:{b + n - 1}]"


def sr(b, n=1):
    return f"s{b}" if n == 1 else f"s[{b}:{b + n - 1}]"


def kernel_head(a, name):
    a(f".globl {name}")
    a(".p2align 8")
    a(f".type {name},@function")
    a(f"{name}:")


def kernel_desc(name, vgpr, accum, sgpr=96):
    return f""".p2align 6
.amdhsa_kernel {name}
  .amdhsa_next_free_vgpr {vgpr}
  .amdhsa_next_free_sgpr {sgpr}
  .amdhsa_accum_offset {accum}
  .amdhsa_group_segment_fixed_size 0
  .amdhsa_kernarg_size 80
  .amdhsa_user_sgpr_count 2
  .amdhsa_user_sgpr_kernarg_segment_ptr 1
  .amdhsa_system_sgpr_workgroup_id_x 1
  .amdhsa_float_denorm_mode_32 3
.end_amdhsa_kernel
"""


def srd(a, d, base, off, nbytes):
    if off == 0:
        a(f"s_mov_b32 s{d}, s{base}")
        a(f"s_mov_b32 s{d + 1}, s{base + 1}")
    else:
        a(f"s_add_u32 s{d}, s{base}, {off}")
        a(f"s_addc_u32 s{d + 1}, s{base + 1}, 0")
    a(f"s_mov_b32 s{d + 2}, {nbytes}")
    a(f"s_mov_b32 s{d + 3}, {SRD3}")


def interleave(main, fill, start=0, per=1, step=1):
    out = []
    fill = list(fill)
    for i, m in enumerate(main):
        out.append(m)
        if i >= start and (i - start) % step == 0:
            for _ in range(per):
                if fill:
                    f = fill.pop(0)
                    if f is not None:
                        out.append(f)
    assert not fill, f"{len(fill)} fillers left"
    return out


import os
STAMP = os.environ.get("STAMP", "") != ""
WS_STAMP = 64 * MB


class Stamps:
    def __init__(self, a, vreg, s_tmp, region):
        self.a, self.v, self.s, self.region, self.n = a, vreg, s_tmp, region, 0

    def init(self):
        if STAMP:
            self.a(f"v_accvgpr_write_b32 a{self.v}, 0")

    def stamp(self, lane=None, real=False):
        if not STAMP:
            return
        a, s = self.a, self.s
        a(f"{'s_memrealtime' if real else 's_memtime'} s[{s}:{s + 1}]")
        a("s_waitcnt lgkmcnt(0)")
        a(f"v_accvgpr_write_b32 a{self.v + 1}, v0")
        a(f"v_accvgpr_read_b32 v0, a{self.v}")
        a("s_nop 1")
        a(f"v_writelane_b32 v0, s{s}, {lane}")
        a("s_nop 1")
        a(f"v_accvgpr_write_b32 a{self.v}, v0")
        a(f"v_accvgpr_read_b32 v0, a{self.v + 1}")

    def flush(self, s_ws, s_wave, vlane, nwaves):
        if not STAMP:
            return
        a, s = self.a, self.s
        srd(a, s, s_ws, WS_STAMP + self.region * MB, MB)
        a(f"s_mul_i32 s{s + 4}, s2, {nwaves}")
        a(f"s_add_u32 s{s + 4}, s{s + 4}, s{s_wave}")
        a(f"s_lshl_b32 s{s + 4}, s{s + 4}, 8")
        a(f"v_lshlrev_b32 v{vlane}, 2, v{vlane}")
        a(f"buffer_store_dword a{self.v}, v{vlane}, s[{s}:{s + 3}], s{s + 4} offen")


HANDOFF = os.environ.get("HANDOFF", "atomic")
POLL_LIMIT = 1 << 16
POLL_SLEEP = int(os.environ.get('PSLEEP', 0))


def publish(a, s_srd, s_group, s_member, v, s_tmp):
    a(f"s_lshl_b32 s{s_tmp}, s{s_group}, 5")
    a(f"v_mov_b32 v{v}, 1")
    a(f"v_mov_b32 v{v + 1}, 0")
    a("s_mov_b64 exec, 1")
    if HANDOFF == "atomic":
        a(f"buffer_atomic_add v{v}, v{v + 1}, {sr(s_srd, 4)}, s{s_tmp} offen sc1")
    else:
        a(f"s_add_u32 s{s_tmp}, s{s_tmp}, s{s_member}")
        a(f"buffer_store_byte v{v}, v{v + 1}, {sr(s_srd, 4)}, s{s_tmp} offen sc1")
    a("s_mov_b64 exec, -1")


def await_group(a, label, s_srd, s_group, v, s_tmp):
    a(f"s_lshl_b32 s{s_tmp}, s{s_group}, 5")
    a(f"s_mov_b32 s{s_tmp + 1}, {POLL_LIMIT}")
    if HANDOFF == "atomic":
        a(f"v_mov_b32 v{v + 1}, 0")
        want = "32"
    else:
        a(f"v_and_b32 v{v + 1}, 7, v0")
        a(f"v_lshlrev_b32 v{v + 1}, 2, v{v + 1}")
        want = "0x01010101"
    a(f"{label}:")
    a(f"buffer_load_dword v{v}, v{v + 1}, {sr(s_srd, 4)}, s{s_tmp} offen sc1")
    a(f"s_sub_u32 s{s_tmp + 1}, s{s_tmp + 1}, 1")
    a(f"s_cbranch_scc1 {label}_end")
    a("s_waitcnt vmcnt(0)")
    a(f"v_cmp_ne_u32 vcc, {want}, v{v}")
    if POLL_SLEEP:
        a(f"s_cbranch_vccz {label}_end")
        a(f"s_sleep {POLL_SLEEP}")
        a(f"s_branch {label}")
    else:
        a(f"s_cbranch_vccnz {label}")
    a(f"{label}_end:")
```

```python
import sys, importlib
from common import *

HEADER = open("recurrent_scan__mha_block__glu_gated_reglu__prompt.s.ref").read().split("; Override launch")[0]


def build(mods):
    a = Asm()
    head = HEADER
    for m in mods:
        L = m.LAUNCH
        head += f"; @launch kernel={m.NAME} grid=({L['grid']},1,1) block=({L['block']},1,1) lds={L['lds']}\n"
    a('.amdgcn_target "amdgcn-amd-amdhsa--gfx950"')
    a(".text")
    seen = []
    for m in mods:
        if m.NAME in seen:
            continue
        seen.append(m.NAME)
        m.gen(a)
    a('.section .rodata,"a"')
    body = a.text()
    for m in mods:
        if m.NAME in seen:
            seen.remove(m.NAME)
            body += kernel_desc(m.NAME, **m.DESC)
    return head + body


if __name__ == "__main__":
    out = sys.argv[1]
    mods = [importlib.import_module(n) for n in sys.argv[2:]]
    open(out, "w").write(build(mods))
```

```python
MB = 1 << 20
WS_XN = 0
WS_QK = 4 * MB
WS_V = 12 * MB
WS_O = 16 * MB
WS_FLAG = 20 * MB
NREP = 8
WS_H = 32 * MB
WS_BYTES = 256 * MB

ARG_X, ARG_WQKV, ARG_WO, ARG_BX, ARG_WG, ARG_WU, ARG_WD, ARG_OUT, ARG_DBG, ARG_WS = [8 * i for i in range(10)]

SRD3 = "0x00020000"
import os


class Asm:
    def __init__(self):
        self.lines = []

    def __call__(self, s=""):
        for ln in s.split("\n"):
            ln = ln.strip()
            if not ln:
                continue
            if ln.endswith(":") or ln.startswith(".") or ln.startswith(";"):
                self.lines.append(ln)
            else:
                self.lines.append("    " + ln)

    def ext(self, seq):
        for s in seq:
            self(s)

    def text(self):
        return "\n".join(self.lines) + "\n"


def vr(b, n=1):
    return f"v{b}" if n == 1 else f"v[{b}:{b + n - 1}]"


def ar(b, n=1):
    return f"a{b}" if n == 1 else f"a[{b}:{b + n - 1}]"


def sr(b, n=1):
    return f"s{b}" if n == 1 else f"s[{b}:{b + n - 1}]"


def kernel_head(a, name):
    a(f".globl {name}")
    a(".p2align 8")
    a(f".type {name},@function")
    a(f"{name}:")


def kernel_desc(name, vgpr, accum, sgpr=96):
    return f""".p2align 6
.amdhsa_kernel {name}
  .amdhsa_next_free_vgpr {vgpr}
  .amdhsa_next_free_sgpr {sgpr}
  .amdhsa_accum_offset {accum}
  .amdhsa_group_segment_fixed_size 0
  .amdhsa_kernarg_size 80
  .amdhsa_user_sgpr_count 2
  .amdhsa_user_sgpr_kernarg_segment_ptr 1
  .amdhsa_system_sgpr_workgroup_id_x 1
  .amdhsa_float_denorm_mode_32 3
.end_amdhsa_kernel
"""


def srd(a, d, base, off, nbytes):
    if off == 0:
        a(f"s_mov_b32 s{d}, s{base}")
        a(f"s_mov_b32 s{d + 1}, s{base + 1}")
    else:
        a(f"s_add_u32 s{d}, s{base}, {off}")
        a(f"s_addc_u32 s{d + 1}, s{base + 1}, 0")
    a(f"s_mov_b32 s{d + 2}, {nbytes}")
    a(f"s_mov_b32 s{d + 3}, {SRD3}")


def interleave(main, fill, start=0, per=1, step=1):
    out = []
    fill = list(fill)
    for i, m in enumerate(main):
        out.append(m)
        if i >= start and (i - start) % step == 0:
            for _ in range(per):
                if fill:
                    f = fill.pop(0)
                    if f is not None:
                        out.append(f)
    assert not fill, f"{len(fill)} fillers left"
    return out


import os
STAMP = os.environ.get("STAMP", "") != ""
WS_STAMP = 64 * MB


class Stamps:
    def __init__(self, a, vreg, s_tmp, region):
        self.a, self.v, self.s, self.region, self.n = a, vreg, s_tmp, region, 0

    def init(self):
        if STAMP:
            self.a(f"v_accvgpr_write_b32 a{self.v}, 0")

    def stamp(self, lane=None, real=False):
        if not STAMP:
            return
        a, s = self.a, self.s
        real = real or os.environ.get("STAMP") == "real"
        a(f"{'s_memrealtime' if real else 's_memtime'} s[{s}:{s + 1}]")
        a("s_waitcnt lgkmcnt(0)")
        a(f"v_accvgpr_write_b32 a{self.v + 1}, v0")
        a(f"v_accvgpr_read_b32 v0, a{self.v}")
        a("s_nop 1")
        a(f"v_writelane_b32 v0, s{s}, {lane}")
        a("s_nop 1")
        a(f"v_accvgpr_write_b32 a{self.v}, v0")
        a(f"v_accvgpr_read_b32 v0, a{self.v + 1}")

    def flush(self, s_ws, s_wave, vlane, nwaves):
        if not STAMP:
            return
        a, s = self.a, self.s
        srd(a, s, s_ws, WS_STAMP + self.region * MB, MB)
        a(f"s_mul_i32 s{s + 4}, s2, {nwaves}")
        a(f"s_add_u32 s{s + 4}, s{s + 4}, s{s_wave}")
        a(f"s_lshl_b32 s{s + 4}, s{s + 4}, 8")
        a(f"v_lshlrev_b32 v{vlane}, 2, v{vlane}")
        a(f"buffer_store_dword a{self.v}, v{vlane}, s[{s}:{s + 3}], s{s + 4} offen")


HANDOFF = os.environ.get("HANDOFF", "atomic")
POLL_LIMIT = 1 << 16
POLL_SLEEP = int(os.environ.get('PSLEEP', 0))


def publish(a, s_srd, s_group, s_member, v, s_tmp):
    a(f"s_lshl_b32 s{s_tmp}, s{s_group}, 5")
    a(f"v_mov_b32 v{v}, 1")
    a(f"v_mov_b32 v{v + 1}, 0")
    a("s_mov_b64 exec, 1")
    if HANDOFF == "atomic":
        a(f"buffer_atomic_add v{v}, v{v + 1}, {sr(s_srd, 4)}, s{s_tmp} offen sc1")
    else:
        a(f"s_add_u32 s{s_tmp}, s{s_tmp}, s{s_member}")
        a(f"buffer_store_byte v{v}, v{v + 1}, {sr(s_srd, 4)}, s{s_tmp} offen sc1")
    a("s_mov_b64 exec, -1")


def await_group(a, label, s_srd, s_group, v, s_tmp):
    a(f"s_lshl_b32 s{s_tmp}, s{s_group}, 5")
    a(f"s_mov_b32 s{s_tmp + 1}, {POLL_LIMIT}")
    if HANDOFF == "atomic":
        a(f"v_mov_b32 v{v + 1}, 0")
        want = "32"
    else:
        a(f"v_and_b32 v{v + 1}, 7, v0")
        a(f"v_lshlrev_b32 v{v + 1}, 2, v{v + 1}")
        want = "0x01010101"
    a(f"{label}:")
    a(f"buffer_load_dword v{v}, v{v + 1}, {sr(s_srd, 4)}, s{s_tmp} offen sc1")
    a(f"s_sub_u32 s{s_tmp + 1}, s{s_tmp + 1}, 1")
    a(f"s_cbranch_scc1 {label}_end")
    a("s_waitcnt vmcnt(0)")
    a(f"v_cmp_ne_u32 vcc, {want}, v{v}")
    if POLL_SLEEP:
        a(f"s_cbranch_vccz {label}_end")
        a(f"s_sleep {POLL_SLEEP}")
        a(f"s_branch {label}")
    else:
        a(f"s_cbranch_vccnz {label}")
    a(f"{label}_end:")


def publish_rep(a, s_srd, s_group, v, s_tmp):
    a(f"s_lshl_b32 s{s_tmp}, s{s_group}, {7 + NREP.bit_length() - 1}")
    a(f"v_mov_b32 v{v}, 1")
    a(f"v_lshlrev_b32 v{v + 1}, 7, v0")
    a(f"s_mov_b64 exec, {(1 << NREP) - 1:#x}")
    a(f"buffer_atomic_add v{v}, v{v + 1}, {sr(s_srd, 4)}, s{s_tmp} offen sc1")
    a("s_mov_b64 exec, -1")


def await_rep(a, label, s_srd, s_line, v, s_tmp):
    a(f"s_lshl_b32 s{s_tmp}, s{s_line}, 7")
    a(f"s_mov_b32 s{s_tmp + 1}, {POLL_LIMIT}")
    a(f"v_mov_b32 v{v + 1}, 0")
    a(f"{label}:")
    a(f"buffer_load_dword v{v}, v{v + 1}, {sr(s_srd, 4)}, s{s_tmp} offen sc1")
    a(f"s_sub_u32 s{s_tmp + 1}, s{s_tmp + 1}, 1")
    a(f"s_cbranch_scc1 {label}_end")
    a("s_waitcnt vmcnt(0)")
    a(f"v_cmp_ne_u32 vcc, 32, v{v}")
    a(f"s_cbranch_vccnz {label}")
    a(f"{label}_end:")
```

```python
MB = 1 << 20
import os
WB = int(os.environ.get("WB", 0)) * MB
WS_XN = WB + 0
WS_QK = WB + 4 * MB
WS_V = WB + 12 * MB
WS_O = WB + 16 * MB
WS_FLAG = WB + 20 * MB
NREP = 8
WS_H = WB + 22 * MB
WS_BYTES = 256 * MB

ARG_X, ARG_WQKV, ARG_WO, ARG_BX, ARG_WG, ARG_WU, ARG_WD, ARG_OUT, ARG_DBG, ARG_WS = [8 * i for i in range(10)]

SRD3 = "0x00020000"
import os


class Asm:
    def __init__(self):
        self.lines = []

    def __call__(self, s=""):
        for ln in s.split("\n"):
            ln = ln.strip()
            if not ln:
                continue
            if ln.endswith(":") or ln.startswith(".") or ln.startswith(";"):
                self.lines.append(ln)
            else:
                self.lines.append("    " + ln)

    def ext(self, seq):
        for s in seq:
            self(s)

    def text(self):
        return "\n".join(self.lines) + "\n"


def vr(b, n=1):
    return f"v{b}" if n == 1 else f"v[{b}:{b + n - 1}]"


def ar(b, n=1):
    return f"a{b}" if n == 1 else f"a[{b}:{b + n - 1}]"


def sr(b, n=1):
    return f"s{b}" if n == 1 else f"s[{b}:{b + n - 1}]"


def kernel_head(a, name):
    a(f".globl {name}")
    a(".p2align 8")
    a(f".type {name},@function")
    a(f"{name}:")


def kernel_desc(name, vgpr, accum, sgpr=96):
    return f""".p2align 6
.amdhsa_kernel {name}
  .amdhsa_next_free_vgpr {vgpr}
  .amdhsa_next_free_sgpr {sgpr}
  .amdhsa_accum_offset {accum}
  .amdhsa_group_segment_fixed_size 0
  .amdhsa_kernarg_size 80
  .amdhsa_user_sgpr_count 2
  .amdhsa_user_sgpr_kernarg_segment_ptr 1
  .amdhsa_system_sgpr_workgroup_id_x 1
  .amdhsa_float_denorm_mode_32 3
.end_amdhsa_kernel
"""


def srd(a, d, base, off, nbytes):
    if off == 0:
        a(f"s_mov_b32 s{d}, s{base}")
        a(f"s_mov_b32 s{d + 1}, s{base + 1}")
    else:
        a(f"s_add_u32 s{d}, s{base}, {off}")
        a(f"s_addc_u32 s{d + 1}, s{base + 1}, 0")
    a(f"s_mov_b32 s{d + 2}, {nbytes}")
    a(f"s_mov_b32 s{d + 3}, {SRD3}")


def interleave(main, fill, start=0, per=1, step=1):
    out = []
    fill = list(fill)
    for i, m in enumerate(main):
        out.append(m)
        if i >= start and (i - start) % step == 0:
            for _ in range(per):
                if fill:
                    f = fill.pop(0)
                    if f is not None:
                        out.append(f)
    assert not fill, f"{len(fill)} fillers left"
    return out


import os
STAMP = os.environ.get("STAMP", "") != ""
WS_STAMP = 64 * MB


class Stamps:
    def __init__(self, a, vreg, s_tmp, region):
        self.a, self.v, self.s, self.region, self.n = a, vreg, s_tmp, region, 0

    def init(self):
        if STAMP:
            self.a(f"v_accvgpr_write_b32 a{self.v}, 0")

    def stamp(self, lane=None, real=False):
        if not STAMP:
            return
        a, s = self.a, self.s
        real = real or os.environ.get("STAMP") == "real"
        a(f"{'s_memrealtime' if real else 's_memtime'} s[{s}:{s + 1}]")
        a("s_waitcnt lgkmcnt(0)")
        a(f"v_accvgpr_write_b32 a{self.v + 1}, v0")
        a(f"v_accvgpr_read_b32 v0, a{self.v}")
        a("s_nop 1")
        a(f"v_writelane_b32 v0, s{s}, {lane}")
        a("s_nop 1")
        a(f"v_accvgpr_write_b32 a{self.v}, v0")
        a(f"v_accvgpr_read_b32 v0, a{self.v + 1}")

    def flush(self, s_ws, s_wave, vlane, nwaves):
        if not STAMP:
            return
        a, s = self.a, self.s
        srd(a, s, s_ws, WS_STAMP + self.region * MB, MB)
        a(f"s_mul_i32 s{s + 4}, s2, {nwaves}")
        a(f"s_add_u32 s{s + 4}, s{s + 4}, s{s_wave}")
        a(f"s_lshl_b32 s{s + 4}, s{s + 4}, 8")
        a(f"v_lshlrev_b32 v{vlane}, 2, v{vlane}")
        a(f"buffer_store_dword a{self.v}, v{vlane}, s[{s}:{s + 3}], s{s + 4} offen")


HANDOFF = os.environ.get("HANDOFF", "atomic")
POLL_LIMIT = 1 << 16
POLL_SLEEP = int(os.environ.get('PSLEEP', 0))


def publish(a, s_srd, s_group, s_member, v, s_tmp):
    a(f"s_lshl_b32 s{s_tmp}, s{s_group}, 5")
    a(f"v_mov_b32 v{v}, 1")
    a(f"v_mov_b32 v{v + 1}, 0")
    a("s_mov_b64 exec, 1")
    if HANDOFF == "atomic":
        a(f"buffer_atomic_add v{v}, v{v + 1}, {sr(s_srd, 4)}, s{s_tmp} offen sc1")
    else:
        a(f"s_add_u32 s{s_tmp}, s{s_tmp}, s{s_member}")
        a(f"buffer_store_byte v{v}, v{v + 1}, {sr(s_srd, 4)}, s{s_tmp} offen sc1")
    a("s_mov_b64 exec, -1")


def await_group(a, label, s_srd, s_group, v, s_tmp):
    a(f"s_lshl_b32 s{s_tmp}, s{s_group}, 5")
    a(f"s_mov_b32 s{s_tmp + 1}, {POLL_LIMIT}")
    if HANDOFF == "atomic":
        a(f"v_mov_b32 v{v + 1}, 0")
        want = "32"
    else:
        a(f"v_and_b32 v{v + 1}, 7, v0")
        a(f"v_lshlrev_b32 v{v + 1}, 2, v{v + 1}")
        want = "0x01010101"
    a(f"{label}:")
    a(f"buffer_load_dword v{v}, v{v + 1}, {sr(s_srd, 4)}, s{s_tmp} offen sc1")
    a(f"s_sub_u32 s{s_tmp + 1}, s{s_tmp + 1}, 1")
    a(f"s_cbranch_scc1 {label}_end")
    a("s_waitcnt vmcnt(0)")
    a(f"v_cmp_ne_u32 vcc, {want}, v{v}")
    if POLL_SLEEP:
        a(f"s_cbranch_vccz {label}_end")
        a(f"s_sleep {POLL_SLEEP}")
        a(f"s_branch {label}")
    else:
        a(f"s_cbranch_vccnz {label}")
    a(f"{label}_end:")


def publish_rep(a, s_srd, s_group, v, s_tmp):
    a(f"s_lshl_b32 s{s_tmp}, s{s_group}, {7 + NREP.bit_length() - 1}")
    a(f"v_mov_b32 v{v}, 1")
    a(f"v_lshlrev_b32 v{v + 1}, 7, v0")
    a(f"s_mov_b64 exec, {(1 << NREP) - 1:#x}")
    a(f"buffer_atomic_add v{v}, v{v + 1}, {sr(s_srd, 4)}, s{s_tmp} offen sc1")
    a("s_mov_b64 exec, -1")


def await_rep(a, label, s_srd, s_line, v, s_tmp):
    a(f"s_lshl_b32 s{s_tmp}, s{s_line}, 7")
    a(f"s_mov_b32 s{s_tmp + 1}, {POLL_LIMIT}")
    a(f"v_mov_b32 v{v + 1}, 0")
    a(f"{label}:")
    a(f"buffer_load_dword v{v}, v{v + 1}, {sr(s_srd, 4)}, s{s_tmp} offen sc1")
    a(f"s_sub_u32 s{s_tmp + 1}, s{s_tmp + 1}, 1")
    a(f"s_cbranch_scc1 {label}_end")
    a("s_waitcnt vmcnt(0)")
    a(f"v_cmp_ne_u32 vcc, 32, v{v}")
    a(f"s_cbranch_vccnz {label}")
    a(f"{label}_end:")
```

```python
MB = 1 << 20
import os
WB = int(os.environ.get("WB", 0)) * MB
WS_XN = WB + 0
WS_QK = WB + 4 * MB
WS_V = WB + 12 * MB
WS_O = WB + 16 * MB
WS_FLAG = WB + 20 * MB
NREP = 8
FLAG_O, FLAG_H, FLAG_Q, FLAG_H1 = 0, 8192, 16384, 32768
FLAG_BYTES = 40960
WS_H = WB + 22 * MB
WS_BYTES = 256 * MB

ARG_X, ARG_WQKV, ARG_WO, ARG_BX, ARG_WG, ARG_WU, ARG_WD, ARG_OUT, ARG_DBG, ARG_WS = [8 * i for i in range(10)]

SRD3 = "0x00020000"
import os


class Asm:
    def __init__(self):
        self.lines = []

    def __call__(self, s=""):
        for ln in s.split("\n"):
            ln = ln.strip()
            if not ln:
                continue
            if ln.endswith(":") or ln.startswith(".") or ln.startswith(";"):
                self.lines.append(ln)
            else:
                self.lines.append("    " + ln)

    def ext(self, seq):
        for s in seq:
            self(s)

    def text(self):
        return "\n".join(self.lines) + "\n"


def vr(b, n=1):
    return f"v{b}" if n == 1 else f"v[{b}:{b + n - 1}]"


def ar(b, n=1):
    return f"a{b}" if n == 1 else f"a[{b}:{b + n - 1}]"


def sr(b, n=1):
    return f"s{b}" if n == 1 else f"s[{b}:{b + n - 1}]"


def kernel_head(a, name):
    a(f".globl {name}")
    a(".p2align 8")
    a(f".type {name},@function")
    a(f"{name}:")


def kernel_desc(name, vgpr, accum, sgpr=96):
    return f""".p2align 6
.amdhsa_kernel {name}
  .amdhsa_next_free_vgpr {vgpr}
  .amdhsa_next_free_sgpr {sgpr}
  .amdhsa_accum_offset {accum}
  .amdhsa_group_segment_fixed_size 0
  .amdhsa_kernarg_size 80
  .amdhsa_user_sgpr_count 2
  .amdhsa_user_sgpr_kernarg_segment_ptr 1
  .amdhsa_system_sgpr_workgroup_id_x 1
  .amdhsa_float_denorm_mode_32 3
.end_amdhsa_kernel
"""


def srd(a, d, base, off, nbytes):
    if off == 0:
        a(f"s_mov_b32 s{d}, s{base}")
        a(f"s_mov_b32 s{d + 1}, s{base + 1}")
    else:
        a(f"s_add_u32 s{d}, s{base}, {off}")
        a(f"s_addc_u32 s{d + 1}, s{base + 1}, 0")
    a(f"s_mov_b32 s{d + 2}, {nbytes}")
    a(f"s_mov_b32 s{d + 3}, {SRD3}")


def interleave(main, fill, start=0, per=1, step=1):
    out = []
    fill = list(fill)
    for i, m in enumerate(main):
        out.append(m)
        if i >= start and (i - start) % step == 0:
            for _ in range(per):
                if fill:
                    f = fill.pop(0)
                    if f is not None:
                        out.append(f)
    assert not fill, f"{len(fill)} fillers left"
    return out


import os
STAMP = os.environ.get("STAMP", "") != ""
WS_STAMP = 64 * MB


class Stamps:
    def __init__(self, a, vreg, s_tmp, region, plain=False):
        self.a, self.v, self.s, self.region, self.n, self.plain = a, vreg, s_tmp, region, 0, plain

    def init(self):
        if STAMP and self.plain:
            self.a(f"v_mov_b32 v{self.v}, 0")
        elif STAMP:
            self.a(f"v_accvgpr_write_b32 a{self.v}, 0")

    def stamp(self, lane=None, real=False):
        if not STAMP:
            return
        a, s = self.a, self.s
        real = real or os.environ.get("STAMP") == "real"
        a(f"{'s_memrealtime' if real else 's_memtime'} s[{s}:{s + 1}]")
        a("s_waitcnt lgkmcnt(0)")
        if self.plain:
            a(f"v_writelane_b32 v{self.v}, s{s}, {lane}")
            return
        a(f"v_accvgpr_write_b32 a{self.v + 1}, v0")
        a(f"v_accvgpr_read_b32 v0, a{self.v}")
        a("s_nop 1")
        a(f"v_writelane_b32 v0, s{s}, {lane}")
        a("s_nop 1")
        a(f"v_accvgpr_write_b32 a{self.v}, v0")
        a(f"v_accvgpr_read_b32 v0, a{self.v + 1}")

    def flush(self, s_ws, s_wave, vlane, nwaves):
        if not STAMP:
            return
        a, s = self.a, self.s
        srd(a, s, s_ws, WS_STAMP + self.region * MB, MB)
        a(f"s_mul_i32 s{s + 4}, s2, {nwaves}")
        a(f"s_add_u32 s{s + 4}, s{s + 4}, s{s_wave}")
        a(f"s_lshl_b32 s{s + 4}, s{s + 4}, 8")
        a(f"v_lshlrev_b32 v{vlane}, 2, v{vlane}")
        a(f"buffer_store_dword {'v' if self.plain else 'a'}{self.v}, v{vlane}, s[{s}:{s + 3}], s{s + 4} offen")


HANDOFF = os.environ.get("HANDOFF", "atomic")
POLL_LIMIT = 1 << 16
POLL_SLEEP = int(os.environ.get('PSLEEP', 0))


def publish(a, s_srd, s_group, s_member, v, s_tmp):
    a(f"s_lshl_b32 s{s_tmp}, s{s_group}, 5")
    a(f"v_mov_b32 v{v}, 1")
    a(f"v_mov_b32 v{v + 1}, 0")
    a("s_mov_b64 exec, 1")
    if HANDOFF == "atomic":
        a(f"buffer_atomic_add v{v}, v{v + 1}, {sr(s_srd, 4)}, s{s_tmp} offen sc1")
    else:
        a(f"s_add_u32 s{s_tmp}, s{s_tmp}, s{s_member}")
        a(f"buffer_store_byte v{v}, v{v + 1}, {sr(s_srd, 4)}, s{s_tmp} offen sc1")
    a("s_mov_b64 exec, -1")


def await_group(a, label, s_srd, s_group, v, s_tmp):
    a(f"s_lshl_b32 s{s_tmp}, s{s_group}, 5")
    a(f"s_mov_b32 s{s_tmp + 1}, {POLL_LIMIT}")
    if HANDOFF == "atomic":
        a(f"v_mov_b32 v{v + 1}, 0")
        want = "32"
    else:
        a(f"v_and_b32 v{v + 1}, 7, v0")
        a(f"v_lshlrev_b32 v{v + 1}, 2, v{v + 1}")
        want = "0x01010101"
    a(f"{label}:")
    a(f"buffer_load_dword v{v}, v{v + 1}, {sr(s_srd, 4)}, s{s_tmp} offen sc1")
    a(f"s_sub_u32 s{s_tmp + 1}, s{s_tmp + 1}, 1")
    a(f"s_cbranch_scc1 {label}_end")
    a("s_waitcnt vmcnt(0)")
    a(f"v_cmp_ne_u32 vcc, {want}, v{v}")
    if POLL_SLEEP:
        a(f"s_cbranch_vccz {label}_end")
        a(f"s_sleep {POLL_SLEEP}")
        a(f"s_branch {label}")
    else:
        a(f"s_cbranch_vccnz {label}")
    a(f"{label}_end:")


def publish_rep(a, s_srd, s_group, v, s_tmp, base=0):
    a(f"s_lshl_b32 s{s_tmp}, s{s_group}, {7 + NREP.bit_length() - 1}")
    if base:
        a(f"s_add_u32 s{s_tmp}, s{s_tmp}, {base}")
    a(f"v_mov_b32 v{v}, 1")
    a(f"v_lshlrev_b32 v{v + 1}, 7, v0")
    a(f"s_mov_b64 exec, {(1 << NREP) - 1:#x}")
    a(f"buffer_atomic_add v{v}, v{v + 1}, {sr(s_srd, 4)}, s{s_tmp} offen sc1")
    a("s_mov_b64 exec, -1")


def await_rep(a, label, s_srd, s_line, v, s_tmp, base=0):
    a(f"s_lshl_b32 s{s_tmp}, s{s_line}, 7")
    if base:
        a(f"s_add_u32 s{s_tmp}, s{s_tmp}, {base}")
    a(f"s_mov_b32 s{s_tmp + 1}, {POLL_LIMIT}")
    a(f"v_mov_b32 v{v + 1}, 0")
    a(f"{label}:")
    a(f"buffer_load_dword v{v}, v{v + 1}, {sr(s_srd, 4)}, s{s_tmp} offen sc1")
    a(f"s_sub_u32 s{s_tmp + 1}, s{s_tmp + 1}, 1")
    a(f"s_cbranch_scc1 {label}_end")
    a("s_waitcnt vmcnt(0)")
    a(f"v_cmp_gt_u32 vcc, 32, v{v}")
    a(f"s_cbranch_vccnz {label}")
    a(f"{label}_end:")


def await_lanes(a, label, s_srd, v, s_cnt, want):
    a(f"s_mov_b32 s{s_cnt}, {POLL_LIMIT}")
    a(f"{label}:")
    a(f"buffer_load_dword v{v}, v{v + 1}, {sr(s_srd, 4)}, 0 offen sc1")
    a(f"s_sub_u32 s{s_cnt}, s{s_cnt}, 1")
    a(f"s_cbranch_scc1 {label}_end")
    a("s_waitcnt vmcnt(0)")
    a(f"v_cmp_gt_u32 vcc, {want}, v{v}")
    a(f"s_cbranch_vccnz {label}")
    a(f"{label}_end:")


def code_touch(a, tag, lo, hi, s_srd, s_wave, s_tmp, v, dst, lanes):
    a(f"s_getpc_b64 s[{s_srd}:{s_srd + 1}]")
    a(f"L_pc_{tag}:")
    a(f"s_add_u32 s{s_srd}, s{s_srd}, {lo} - L_pc_{tag}")
    a(f"s_addc_u32 s{s_srd + 1}, s{s_srd + 1}, {'0' if tag.startswith('f') else '-1'}")
    a(f"s_mov_b32 s{s_srd + 2}, {hi} - {lo}")
    a(f"s_mov_b32 s{s_srd + 3}, {SRD3}")
    a(f"s_lshr_b32 s{s_tmp}, s2, 3")
    a(f"s_lshl_b32 s{s_tmp}, s{s_tmp}, 2")
    a(f"s_add_u32 s{s_tmp}, s{s_tmp}, s{s_wave}")
    a(f"s_mul_i32 s{s_tmp}, s{s_tmp}, {128 * lanes}")
    a(f"v_lshlrev_b32 v{v}, 7, v0")
    a(f"s_mov_b64 exec, {(1 << lanes) - 1}")
    a(f"buffer_load_dword {dst}, v{v}, s[{s_srd}:{s_srd + 3}], s{s_tmp} offen")
    a("s_mov_b64 exec, -1")
```

```python
import os, sys, importlib
from common import *

HEADER = open("recurrent_scan__mha_block__glu_gated_reglu__prompt.s.ref").read().split("; Override launch")[0]


def build(mods):
    a = Asm()
    head = HEADER
    single = len(mods) == 1 and os.environ.get("SINGLE")
    for m in mods:
        L = m.LAUNCH
        if single:
            m.NAME = "recurrent_scan__mha_block__glu_gated_reglu__prompt_kernel"
        head += f"; @launch {'' if single else 'kernel=' + m.NAME + ' '}grid=({L['grid']},1,1) block=({L['block']},1,1) lds={L['lds']}\n"
    a('.amdgcn_target "amdgcn-amd-amdhsa--gfx950"')
    a(".text")
    seen = []
    for m in mods:
        if m.NAME in seen:
            continue
        seen.append(m.NAME)
        m.gen(a)
    a('.section .rodata,"a"')
    body = a.text()
    for m in mods:
        if m.NAME in seen:
            seen.remove(m.NAME)
            body += kernel_desc(m.NAME, **m.DESC)
    return head + body


if __name__ == "__main__":
    out = sys.argv[1]
    mods = [importlib.import_module(n) for n in sys.argv[2:]]
    open(out, "w").write(build(mods))
```
